```python
import torch

def _softmax(x, axis=-1):
    return torch.softmax(x, dim=axis)
def _gelu(x):
    return torch.nn.functional.gelu(x, approximate="tanh")
def _silu(x):
    return torch.nn.functional.silu(x)
def _sigmoid(x):
    return torch.sigmoid(x)
def _layernorm(x, axis=-1, eps=1e-5):
    m = x.mean(dim=axis, keepdim=True)
    v = x.var(dim=axis, keepdim=True, unbiased=False)
    return (x - m) / torch.sqrt(v + eps)
def _scatter_add(tgt, idx, src, axis=0):
    return tgt.clone().index_add_(axis, idx, src)
def _segment_sum(src, seg, n):
    out = torch.zeros((n,) + src.shape[1:], dtype=src.dtype)
    return out.index_add_(0, seg, src)
def _pad(x, pw):
    flat = tuple(v for pair in reversed(pw) for v in pair)
    return torch.nn.functional.pad(x, flat)

kernel_name = 'concat_heads__sliding_block__spectral_fnet__prompt'

def setup_inputs():

    _w = (lambda a: (lambda t: t.to(torch.bfloat16) if t.is_floating_point() else t)(torch.as_tensor(a)))
    def _A_setup():
        B, S, D = 1, 2048, 1024
        return {
            "x": _w((lambda *s: torch.randn(*s, dtype=torch.bfloat16) * 0.2)(B, S, D)),
            "wqkv": _w((lambda *s: torch.randn(*s, dtype=torch.bfloat16) * 0.8)(D, 3 * D)),
            "wo": _w((lambda *s: torch.randn(*s, dtype=torch.bfloat16) * 0.2)(D, D)),
        }
    _A_in = _A_setup()

    def _B_setup():
        B, S, D = 1, 2048, 1024
        ns = torch.arange(S)[:, None] * torch.arange(S)[None, :]
        nd = torch.arange(D)[:, None] * torch.arange(D)[None, :]
        Ws_re = torch.cos(-2.0 * torch.pi * ns / S).to(float)
        Ws_im = torch.sin(-2.0 * torch.pi * ns / S).to(float)
        Wd_re = torch.cos(-2.0 * torch.pi * nd / D).to(float)
        Wd_im = torch.sin(-2.0 * torch.pi * nd / D).to(float)
        return {
            "x": _w((lambda *s: torch.randn(*s, dtype=torch.bfloat16) * 0.05)(B, S, D)),
            "dft_seq_re": _w(Ws_re),
            "dft_seq_im": _w(Ws_im),
            "dft_hid_re": _w(Wd_re),
            "dft_hid_im": _w(Wd_im),
        }
    _B_in = _B_setup()

    return {
        "A_x": _A_in["x"],
        "A_wqkv": _A_in["wqkv"],
        "A_wo": _A_in["wo"],
        "B_x": _B_in["x"],
        "B_dft_seq_re": _B_in["dft_seq_re"],
        "B_dft_seq_im": _B_in["dft_seq_im"],
        "B_dft_hid_re": _B_in["dft_hid_re"],
        "B_dft_hid_im": _B_in["dft_hid_im"],
    }

def reference(A_x, A_wqkv, A_wo, B_x, B_dft_seq_re, B_dft_seq_im, B_dft_hid_re, B_dft_hid_im):
    def _A_ref(x, wqkv, wo):
        B, S, D = x.shape
        H = 32; Dh = D // H; W = 256
        qkv = (lambda x, *d: x.permute(*d))((x @ wqkv).reshape(B, S, 3, H, Dh), 2, 0, 3, 1, 4)
        q, k, v = qkv[0], qkv[1], qkv[2]
        scores = torch.einsum("bhqd,bhkd->bhqk", q, k) * (Dh ** -0.5)
        idx = torch.arange(S)
        mask = (idx[:, None] - idx[None, :] >= 0) & (idx[:, None] - idx[None, :] < W)
        scores = torch.where(mask[None, None], scores, -1e9)
        p = _softmax(scores, axis=-1)
        o = torch.einsum("bhqk,bhkd->bhqd", p, v)
        return (lambda x, *d: x.permute(*d))(o, 0, 2, 1, 3).reshape(B, S, D) @ wo

    def _B_ref(x, dft_seq_re, dft_seq_im, dft_hid_re, dft_hid_im):
        a = torch.einsum("bsd,ed->bse", x, dft_hid_re)
        b = torch.einsum("bsd,ed->bse", x, dft_hid_im)
        y = torch.einsum("ts,bse->bte", dft_seq_re, a) - torch.einsum("ts,bse->bte", dft_seq_im, b)
        return y

    a = _A_ref(A_x, A_wqkv, A_wo)
    b = _B_ref(B_x, B_dft_seq_re, B_dft_seq_im, B_dft_hid_re, B_dft_hid_im)
    return torch.concatenate([a, b], axis=-1)
```

```python
class Asm:
    def __init__(self):
        self.lines = []
        self.nlabel = 0
    def __call__(self, s):
        for l in s.split("\n"):
            l = l.strip()
            if l:
                self.lines.append(("" if l.endswith(":") or l.startswith(".") else "    ") + l)
    def label(self, name):
        self.lines.append(name + ":")
    def newlabel(self, base="L"):
        self.nlabel += 1
        return f"{base}_{self.nlabel}"
    def comment(self, s):
        self.lines.append("    ; " + s)
    def text(self):
        return "\n".join(self.lines) + "\n"

def v(a, n=1):
    return f"v{a}" if n == 1 else f"v[{a}:{a+n-1}]"
def s(a, n=1):
    return f"s{a}" if n == 1 else f"s[{a}:{a+n-1}]"

def interleave(main, fill, per_gap):
    out = []
    fi = 0
    for i, m in enumerate(main):
        out.append(m)
        n = per_gap[i] if isinstance(per_gap, (list, tuple)) else per_gap
        for _ in range(n):
            if fi < len(fill):
                out.append(fill[fi]); fi += 1
    out += fill[fi:]
    return out

HDR = """.amdgcn_target "amdgcn-amd-amdhsa--gfx950"
.text
"""
def kernel_head(name):
    return f""".globl {name}
.p2align 8
.type {name},@function
{name}:
"""
def kernel_desc(name, vgpr=256, sgpr=102, accum=None):
    accum = accum or ((vgpr + 3) // 4 * 4)
    return f""".p2align 6
.amdhsa_kernel {name}
  .amdhsa_next_free_vgpr {vgpr}
  .amdhsa_next_free_sgpr {sgpr}
  .amdhsa_accum_offset {accum}
  .amdhsa_group_segment_fixed_size 0
  .amdhsa_kernarg_size 88
  .amdhsa_user_sgpr_count 2
  .amdhsa_user_sgpr_kernarg_segment_ptr 1
  .amdhsa_system_sgpr_workgroup_id_x 1
.end_amdhsa_kernel
"""
```

```python
import re
TRANS = ("v_exp_f32", "v_log_f32", "v_rcp_f32", "v_rsq_f32", "v_sqrt_f32", "v_sin_f32", "v_cos_f32")
def regs(tok):
    tok = tok.strip()
    tok = re.sub(r"^(-|neg\(|abs\()+", "", tok).rstrip(")")
    m = re.fullmatch(r"([vsa])(\d+)", tok)
    if m: return [(m.group(1), int(m.group(2)))]
    m = re.fullmatch(r"([vsa])\[(\d+):(\d+)\]", tok)
    if m: return [(m.group(1), i) for i in range(int(m.group(2)), int(m.group(3)) + 1)]
    if tok == "vcc": return [("s", "vcc")]
    if tok == "m0": return [("s", "m0")]
    if tok == "exec": return [("s", "exec")]
    return []
def parse(line):
    l = line.split(";")[0].strip()
    if not l or l.endswith(":") or l.startswith("."): return None
    p = l.split(None, 1)
    op = p[0]
    ops = []
    if len(p) > 1:
        ops = [x.strip() for x in p[1].split(",")]
        last = ops[-1].split()
        ops[-1] = last[0]
        mods = last[1:]
    else:
        mods = []
    return op, ops, mods
def classify(op, ops, mods):
    k = dict(kind="other", wr=[], rd=[], c=[], ab=[], passes=0, storedata=[])
    base = re.sub(r"_e(32|64)$", "", op)
    if base.startswith("v_mfma"):
        k["kind"] = "mfma"; k["wr"] = regs(ops[0]); k["ab"] = regs(ops[1]) + regs(ops[2]); k["c"] = regs(ops[3]); k["rd"] = k["ab"] + k["c"]
        k["passes"] = 8 if "32x32" in base else 4
    elif base.startswith("v_"):
        k["kind"] = "trans" if base in TRANS else "valu"
        if base.startswith("v_permlane") and "swap" in base:
            k["kind"] = "perm"; k["wr"] = regs(ops[0]) + regs(ops[1]); k["rd"] = k["wr"]
        elif base.startswith("v_cmp"):
            k["wr"] = regs(ops[0]); k["rd"] = sum((regs(o) for o in ops[1:]), [])
        elif base in ("v_readfirstlane_b32", "v_readlane_b32"):
            k["kind"] = "rdlane"; k["wr"] = regs(ops[0]); k["rd"] = sum((regs(o) for o in ops[1:]), [])
        else:
            k["wr"] = regs(ops[0]); k["rd"] = sum((regs(o) for o in ops[1:]), [])
            if base in ("v_fmac_f32", "v_dot2c_f32_bf16"): k["rd"] += k["wr"]
    elif base.startswith("buffer_") or base.startswith("global_"):
        k["kind"] = "vmem"
        lds = "lds" in mods
        if "store" in base or "atomic" in base:
            k["rd"] = sum((regs(o) for o in ops), [])
            if re.search(r"dwordx[34]", base): k["storedata"] = regs(ops[0]) if base.startswith("buffer_") else regs(ops[1])
        elif lds:
            k["rd"] = sum((regs(o) for o in ops), []) + [("s", "m0")]; k["lds"] = True
        else:
            k["wr"] = regs(ops[0]); k["rd"] = sum((regs(o) for o in ops[1:]), [])
    elif base.startswith("ds_"):
        k["kind"] = "ds"
        if "read" in base or "permute" in base or "swizzle" in base:
            k["wr"] = regs(ops[0]); k["rd"] = sum((regs(o) for o in ops[1:]), [])
        else:
            k["rd"] = sum((regs(o) for o in ops), [])
    elif base.startswith("s_"):
        k["kind"] = "salu"
        if base == "s_nop": k["kind"] = "nop"; k["n"] = int(ops[0], 0) + 1
        elif ops and not base.startswith(("s_cmp", "s_cbranch", "s_branch", "s_waitcnt", "s_barrier", "s_setprio", "s_sleep", "s_endpgm")):
            k["wr"] = regs(ops[0]); k["rd"] = sum((regs(o) for o in ops[1:]), [])
    return k
def need(prev, cur):
    pw = set(prev["wr"]); n = 0
    isvalu = lambda k: k["kind"] in ("valu", "trans", "perm", "rdlane")
    if prev["kind"] == "mfma":
        P = prev["passes"]
        if cur["kind"] == "mfma":
            if pw & set(cur["ab"]): n = max(n, P + 4)
            if pw & set(cur["c"]):
                if not (cur["c"] == prev["wr"] and cur["passes"] == P): n = max(n, P + 2)
            elif pw & set(cur["wr"]):
                n = max(n, P + 2)
        elif isvalu(cur) or cur["kind"] in ("vmem", "ds"):
            if pw & (set(cur["rd"]) | set(cur["wr"])): n = max(n, P + 4)
            if isvalu(cur) and set(prev["c"]) & set(cur["wr"]): n = max(n, P - 1)
    if isvalu(prev):
        pv = {r for r in pw if r[0] in "va"}; ps = {r for r in pw if r[0] == "s"}
        if cur["kind"] == "mfma" and pv & set(cur["rd"]): n = max(n, 2)
        if cur["kind"] == "perm" and pv & set(cur["rd"]): n = max(n, 2)
        if cur["kind"] == "rdlane" and pv & set(cur["rd"]): n = max(n, 1)
        if prev["kind"] == "trans" and isvalu(cur) and cur["kind"] != "trans" and pv & set(cur["rd"]): n = max(n, 1)
        if cur["kind"] == "vmem" and ps & set(cur["rd"]): n = max(n, 5)
        if isvalu(cur) and ps & set(cur["rd"]): n = max(n, 2 if cur["kind"] != "rdlane" else 4)
        if cur["kind"] == "salu" and ps & set(cur["rd"]): n = max(n, 1)
    if prev["kind"] == "salu" and ("s", "m0") in pw and cur.get("lds"): n = max(n, 1)
    if prev["kind"] == "vmem" and prev["storedata"] and set(prev["storedata"]) & set(cur["wr"]): n = max(n, 2 if isvalu(cur) else 1)
    return n
def fix(lines, verbose=False):
    out = []; hist = []
    ins = 0
    for line in lines:
        p = parse(line)
        if p is None:
            out.append(line); continue
        k = classify(*p)
        req = 0
        dist = 0
        for pk in reversed(hist):
            r = need(pk, k)
            if r > dist: req = max(req, r - dist)
            dist += pk.get("n", 1)
            if dist > 24: break
        if req > 0:
            ins += 1
            if verbose: print("hazard: inserted", req, "before", line.strip())
            nn = req
            while nn > 0:
                c = min(nn, 16)
                out.append(f"    s_nop {c-1}")
                hist.append(dict(kind="nop", wr=[], rd=[], c=[], ab=[], passes=0, storedata=[], n=c)); nn -= c
        out.append(line); hist.append(k)
        if len(hist) > 40: hist = hist[-30:]
    return out
```

```python
import sys, struct
from asmlib import *
import hazard

NAME = "concat_heads__sliding_block__spectral_fnet__prompt_kernel"
STG = 40960
L_BX = 122880
L_CONST = 139264
L_EPOCH = 154624
L_V = 131072
L_Q = 98304
WS_KV = 0
WS_O = 0x800000
WS_T = 0xC00000
WS_FKV = 0x1000000
WS_FO = 0x1040000
WS_FT = 0x1050000
WS_STAMP = 0x1100000
NEGBIG = 0xF149F2CA
SPIN = 1 << 14

def f2u(x): return struct.unpack("<I", struct.pack("<f", x))[0]
QSCALE = f2u(32 ** -0.5 * 1.4426950408889634)

XS, WS_, WSS, WOS, BXS, OUTS, DBGS = 4, 8, 12, 16, 20, 24, 28
sW, sRB, sHG, sEP = 32, 33, 34, 35
LANE, L16 = 1, 2

def srd(n): return f"s[{n}:{n+3}]"

class Gen:
    def __init__(self, stamps=False, rot=5, stop_after=None):
        self.a = Asm(); self.stamps = stamps; self.rot = rot; self.stop_after = stop_after
        self.nst = 0
    def stamp(self):
        if self.stamps:
            i = self.nst; self.nst += 1
            assert i < 12
            self.a(f"s_memrealtime s[{76+2*i}:{77+2*i}]")
    def poll(self, vaddr, soff, vtmp, width=1):
        a = self.a
        L = a.newlabel("L_poll"); D = a.newlabel("L_polldone")
        a(f"s_mov_b32 s75, {SPIN}")
        a.label(L)
        if width == 1:
            a(f"buffer_load_dword v{vtmp}, v{vaddr}, {srd(WSS)}, {soff} offen sc1")
            a("s_waitcnt vmcnt(0)")
            a(f"v_cmp_ne_u32 vcc, s{sEP}, v{vtmp}")
        else:
            a(f"buffer_load_dwordx4 {v(vtmp,4)}, v{vaddr}, {srd(WSS)}, {soff} offen sc1")
            a("s_waitcnt vmcnt(0)")
            a(f"v_xor_b32 v{vtmp}, s{sEP}, v{vtmp}")
            for i in range(1, 4):
                a(f"v_xor_b32 v{vtmp+i}, s{sEP}, v{vtmp+i}")
            a(f"v_or3_b32 v{vtmp}, v{vtmp}, v{vtmp+1}, v{vtmp+2}")
            a(f"v_or_b32 v{vtmp}, v{vtmp}, v{vtmp+3}")
            a(f"v_cmp_ne_u32 vcc, 0, v{vtmp}")
        a("s_nop 4")
        a(f"s_cbranch_vccz {D}")
        a("s_sleep 1")
        a("s_sub_u32 s75, s75, 1")
        a("s_cmp_lg_u32 s75, 0")
        a(f"s_cbranch_scc1 {L}")
        a.label(D)
    def signal(self, soff, vt0, vt1):
        a = self.a
        a(f"v_mov_b32 v{vt0}, s{sEP}")
        a(f"v_mov_b32 v{vt1}, 0")
        a("s_mov_b64 exec, 1")
        a(f"buffer_store_dword v{vt0}, v{vt1}, {srd(WSS)}, {soff} offen sc1")
        a("s_mov_b64 exec, -1")

    def setup(self):
        a = self.a
        a(f"""
        s_cmp_ge_u32 s2, 256
        s_cbranch_scc1 L_end
        s_load_dwordx4 s[40:43], s[0:1], 0
        s_load_dwordx4 s[44:47], s[0:1], 16
        s_load_dwordx4 s[48:51], s[0:1], 64
        s_load_dwordx2 s[52:53], s[0:1], 80
        s_memrealtime s[54:55]
        """)
        self.stamp()
        a(f"""
        v_lshrrev_b32 v3, 6, v0
        v_and_b32 v{LANE}, 63, v0
        v_readfirstlane_b32 s{sW}, v3
        v_lshlrev_b32 v{L16}, 4, v{LANE}
        s_and_b32 s36, s2, 7
        s_lshr_b32 s37, s2, 3
        s_lshr_b32 s{sRB}, s36, 2
        s_lshl_b32 s{sRB}, s{sRB}, 3
        s_and_b32 s38, s37, 7
        s_add_u32 s{sRB}, s{sRB}, s38
        s_and_b32 s{sHG}, s36, 3
        s_lshl_b32 s{sHG}, s{sHG}, 2
        s_lshr_b32 s38, s37, 3
        s_add_u32 s{sHG}, s{sHG}, s38
        s_mov_b32 s{XS+2}, 0x400000
        s_mov_b32 s{XS+3}, 0x20000
        s_mov_b32 s{WS_+2}, 0x600000
        s_mov_b32 s{WS_+3}, 0x20000
        s_mov_b32 s{WSS+2}, 0x10000000
        s_mov_b32 s{WSS+3}, 0x20000
        s_mov_b32 s{WOS+2}, 0x200000
        s_mov_b32 s{WOS+3}, 0x20000
        s_mov_b32 s{BXS+2}, 0x400000
        s_mov_b32 s{BXS+3}, 0x20000
        s_mov_b32 s{OUTS+2}, 0x800000
        s_mov_b32 s{OUTS+3}, 0x20000
        s_mov_b32 s{DBGS+2}, 0x100
        s_mov_b32 s{DBGS+3}, 0x20000
        s_waitcnt lgkmcnt(0)
        s_mov_b32 s{XS}, s40
        s_mov_b32 s{XS+1}, s41
        s_mov_b32 s{WS_}, s42
        s_mov_b32 s{WS_+1}, s43
        s_mov_b32 s{WOS}, s44
        s_mov_b32 s{WOS+1}, s45
        s_mov_b32 s{BXS}, s46
        s_mov_b32 s{BXS+1}, s47
        s_mov_b32 s{OUTS}, s48
        s_mov_b32 s{OUTS+1}, s49
        s_mov_b32 s{DBGS}, s50
        s_mov_b32 s{DBGS+1}, s51
        s_mov_b32 s{WSS}, s52
        s_mov_b32 s{WSS+1}, s53
        s_mov_b32 s39, {STG}
        s_cmp_ge_u32 s{sW}, 4
        s_cbranch_scc1 L_prod
        """)

    def consumer(self):
        a = self.a
        XF = [16, 32]; WF = [48, 72]; ACC = 96
        def acc(sec, tb, j, ft): return ACC + (((sec * 2 + tb) * 2 + j) * 2 + ft) * 4
        a(f"""
        s_or_b32 s36, s2, s{sW}
        s_cmp_lg_u32 s36, 0
        s_cbranch_scc1 L_noepoch
        s_or_b32 s54, s54, 1
        v_mov_b32 v4, s54
        v_mov_b32 v5, 0
        s_mov_b64 exec, 1
        buffer_store_dword v4, v5, {srd(DBGS)}, 0 offen sc1
        s_mov_b64 exec, -1
        L_noepoch:
        """)
        a(f"""
        v_and_b32 v8, 31, v{LANE}
        v_cvt_f32_u32 v8, v8                     ; n
        s_cmp_lt_u32 s{sW}, 2
        s_cselect_b32 s36, {f2u(1/32)}, 0
        s_cselect_b32 s37, 0, {f2u(1/1024)}
        s_or_b32 s36, s36, s37                   ; scale
        s_and_b32 s37, s{sW}, 1
        s_cselect_b32 s37, {f2u(0.25)}, 0        ; phase
        v_mul_f32 v8, s36, v8
        v_lshrrev_b32 v9, 5, v{LANE}
        v_cvt_f32_u32 v9, v9
        v_mul_f32 v9, 4.0, v9                    ; 4*hi
        v_fma_f32 v16, v8, v9, s37
        v_mul_f32 v10, 0x40a00000, v8            ; 5*base
        """)
        for i in range(1, 16):
            a(f"v_add_f32 v{16+i}, v{15+i}, v{10 if i % 4 == 0 else 8}")
        for i in range(16):
            a(f"v_cos_f32 v{16+i}, v{16+i}")
        a(f"""
        s_cmp_lt_u32 s{sW}, 2
        s_cbranch_scc0 L_cw23
        """)
        for j in range(8):
            a(f"v_cvt_pk_bf16_f32 v{32+j}, v{16+2*j}, v{17+2*j}")
        a(f"""
        s_lshl_b32 s36, s{sW}, 11
        s_add_u32 s36, s36, {L_CONST}
        v_add_u32 v8, s36, v{L16}
        ds_write_b128 v8, v[32:35]
        ds_write_b128 v8, v[36:39] offset:1024
        s_cmp_eq_u32 s{sW}, 0
        s_cbranch_scc1 L_cw0
        """)
        for j in range(8):
            a(f"v_xor_b32 v{40+j}, 0x80008000, v{32+j}")
        a(f"""
        ds_write_b128 v8, v[40:43] offset:2048
        ds_write_b128 v8, v[44:47] offset:3072
        s_branch L_cwdone
        L_cw0:
        """)
        a(f"""
        s_and_b32 s36, s2, 7
        s_lshl_b32 s36, s36, 3
        s_lshr_b32 s37, s2, 5
        s_add_u32 s36, s36, s37                  ; class j
        s_lshr_b32 s37, s2, 3
        s_and_b32 s38, s37, 1                    ; half
        s_bfe_u32 s37, s37, 0x10001              ; mirror
        s_sub_u32 s40, 128, s36
        s_cmp_eq_u32 s36, 0
        s_cselect_b32 s40, 64, s40
        s_cmp_eq_u32 s37, 0
        s_cselect_b32 s40, s36, s40              ; t1
        s_cselect_b32 s41, {f2u(-0.25)}, 0
        s_cselect_b32 s42, 0, {f2u(0.25)}
        s_or_b32 s41, s41, s42                   ; sigma/4
        s_cmp_eq_u32 s40, 64
        s_cselect_b32 s41, 0, s41
        s_cselect_b32 s42, 0, 1.0                ; a0
        s_cmp_eq_u32 s40, 0
        s_cselect_b32 s43, 0, 1.0                ; a1
        s_lshl_b32 s38, s38, 10
        s_add_u32 s40, s40, s38                  ; t1 + 1024*half
        v_bfe_u32 v9, v{LANE}, 1, 3              ; rr8 = (l%16)/2
        v_lshlrev_b32 v9, 7, v9
        v_add_u32 v9, s40, v9                    ; t
        v_cvt_f32_u32 v9, v9
        v_mul_f32 v9, {f2u(1/2048)}, v9          ; t/2048
        v_and_b32 v10, 1, v{LANE}
        v_cvt_f32_u32 v10, v10
        v_mul_f32 v10, {f2u(0.25)}, v10          ; c'/4
        v_lshrrev_b32 v11, 4, v{LANE}
        v_lshlrev_b32 v11, 2, v11
        v_cvt_f32_u32 v11, v11                   ; 4g
        v_fma_f32 v16, v9, v11, v10
        v_add_f32 v18, v16, v9
        v_add_f32 v20, v18, v9
        v_add_f32 v22, v20, v9
        """)
        for j in range(4):
            a(f"v_add_f32 v{17+2*j}, s41, v{16+2*j}")
        for j in range(8):
            a(f"v_cos_f32 v{16+j}, v{16+j}")
        for j in range(8):
            a(f"v_mul_f32 v{16+j}, s{42 + (j & 1)}, v{16+j}")
        for j in range(4):
            a(f"v_cvt_pk_bf16_f32 v{32+j}, v{16+2*j}, v{17+2*j}")
        a(f"""
        ds_write_b128 v8, v[32:35] offset:{14*1024}
        s_branch L_cwdone
        L_cw23:
        s_lshl_b32 s36, s{sW}, 12
        s_add_u32 s36, s36, {L_CONST + 6*1024 - 2*4096}
        v_add_u32 v8, s36, v{L16}
        ds_write_b128 v8, v[16:19]
        ds_write_b128 v8, v[20:23] offset:1024
        ds_write_b128 v8, v[24:27] offset:2048
        ds_write_b128 v8, v[28:31] offset:3072
        L_cwdone:
        """)
        a(f"""
        s_lshr_b32 s40, s{sW}, 1                 ; wm
        s_and_b32 s41, s{sW}, 1                  ; wh
        v_and_b32 v8, 15, v{LANE}                ; r
        v_lshrrev_b32 v9, 4, v{LANE}             ; g
        v_lshrrev_b32 v10, 1, v8                 ; sw
        v_xor_b32 v10, v10, v9
        v_lshlrev_b32 v10, 4, v10
        v_and_b32 v11, 8, v8
        v_add_u32 v11, v11, v8                   ; 16*(r/8) + r%8
        v_lshlrev_b32 v12, 7, v11
        v_add_u32 v10, v10, v12
        s_lshl_b32 s36, s40, 13
        v_add_u32 v4, s36, v10
        v_xor_b32 v5, 64, v4
        ; W addr
        v_bfe_u32 v10, v{LANE}, 3, 1             ; (rr>>1)&1
        v_and_b32 v12, 1, v9
        v_lshlrev_b32 v12, 1, v12
        v_or_b32 v10, v10, v12                   ; swz
        s_lshl_b32 s36, s41, 1
        v_xor_b32 v10, s36, v10
        v_lshlrev_b32 v10, 5, v10
        v_and_b32 v12, 3, v{LANE}
        v_lshlrev_b32 v12, 3, v12
        v_add_u32 v10, v10, v12
        v_bfe_u32 v12, v{LANE}, 2, 2             ; rr
        v_lshlrev_b32 v13, 3, v9
        v_add_u32 v12, v12, v13
        v_lshlrev_b32 v12, 7, v12
        v_add_u32 v10, v10, v12
        v_add_u32 v6, 16384, v10
        v_xor_b32 v7, 32, v6
        v_lshrrev_b32 v12, 1, v9                 ; f
        v_lshlrev_b32 v12, 10, v12
        v_and_b32 v13, 1, v9
        v_lshlrev_b32 v13, 9, v13
        v_add_u32 v12, v12, v13
        v_lshlrev_b32 v13, 4, v11
        v_add_u32 v14, v12, v13
        v_lshlrev_b32 v13, 4, v8
        v_add_u32 v15, v12, v13
        """)
        for r in range(ACC, ACC + 96):
            a(f"v_mov_b32 v{r}, 0")
        def reads(kk, st):
            X = lambda tb, j: f"ds_read_b128 {v(XF[st] + (tb*2+j)*4, 4)}, v{4+kk} offset:{tb*4096 + j*1024}"
            def W(sec, ft):
                b = WF[st] + (sec*2+ft)*4
                o = sec*8192 + kk*4096
                return [f"ds_read_b64_tr_b16 {v(b,2)}, v{6+ft} offset:{o}", f"ds_read_b64_tr_b16 {v(b+2,2)}, v{6+ft} offset:{o+512}"]
            return W(0,0) + [X(0,0), X(0,1), X(1,0), X(1,1)] + W(0,1) + W(1,0) + W(1,1) + W(2,0) + W(2,1)
        def mfmas(st):
            m = []
            for sec in range(3):
                for ft in range(2):
                    for tb in range(2):
                        for j in range(2):
                            x = v(XF[st] + (tb*2+j)*4, 4); w = v(WF[st] + (sec*2+ft)*4, 4); d = v(acc(sec, tb, j, ft), 4)
                            m.append(f"v_mfma_f32_16x16x32_bf16 {d}, {w}, {x}, {d}" if sec < 2 else f"v_mfma_f32_16x16x32_bf16 {d}, {x}, {w}, {d}")
            return m
        a("s_mov_b32 s42, 0")
        a("s_mov_b32 s43, 16")
        a("s_waitcnt lgkmcnt(0)")
        a("s_barrier")
        self.stamp()
        for r in reads(0, 0): a(r)
        a(".p2align 6")
        a.label("L_cloop")
        a("s_waitcnt lgkmcnt(0)")
        sal = [f"s_add_u32 s42, s42, 1", f"s_cmp_eq_u32 s42, 3", f"s_cselect_b32 s44, {-(2*STG) & 0xffffffff}, s39", "s_cselect_b32 s42, 0, s42"]
        for ins in interleave(mfmas(0), reads(1, 1) + sal, [1]*24): a(ins)
        a("s_waitcnt lgkmcnt(0)")
        a("s_barrier")
        adv = [f"v_add_u32 v{r}, s44, v{r}" for r in (6, 4, 7)]
        for ins in interleave(mfmas(1), adv + reads(0, 0) + ["v_add_u32 v5, s44, v5", "s_sub_u32 s43, s43, 1", "s_cmp_lg_u32 s43, 0"], [2, 1] + [1]*22): a(ins)
        a("s_cbranch_scc1 L_cloop")
        self.stamp()
        a(f"""
        v_mov_b32 v8, {L_EPOCH}
        ds_read_b32 v9, v8
        s_lshl_b32 s36, s{sRB}, 4
        s_add_u32 s36, s36, s{sHG}               ; rb*16+hg
        s_lshl_b32 s37, s36, 15
        s_lshl_b32 s38, s40, 14
        s_lshl_b32 s44, s41, 12
        s_add_u32 s38, s38, s44                  ; + wh*4096
        s_add_u32 s37, s37, s38
        s_add_u32 s45, s37, 8192                 ; tb=1
        s_add_u32 s44, s38, 65536
        v_add_u32 v4, s44, v14
        v_add_u32 v5, s44, v15
        s_lshr_b32 s44, s38, 1
        s_add_u32 s44, s44, {L_Q}
        v_add_u32 v6, s44, v14
        s_lshl_b32 s36, s36, 2
        s_add_u32 s36, s36, s{sW}
        s_lshl_b32 s36, s36, 7
        s_add_u32 s46, s36, {WS_FKV}
        s_waitcnt lgkmcnt(0)
        v_readfirstlane_b32 s{sEP}, v9
        """)
        t = 16
        for tb in range(2):
            for j in range(2):
                for ft in range(2):
                    b = acc(1, tb, j, ft)
                    a(f"v_cvt_pk_bf16_f32 v{t+2*ft}, v{b}, v{b+1}")
                    a(f"v_cvt_pk_bf16_f32 v{t+2*ft+1}, v{b+2}, v{b+3}")
                a(f"buffer_store_dwordx4 {v(t,4)}, v14, {srd(WSS)}, s{37 if tb == 0 else 45} offen offset:{j*128} sc1")
                a(f"ds_write_b128 v4, {v(t,4)} offset:{tb*8192 + j*128}")
                t += 4
        for tb in range(2):
            for ft in range(2):
                for j in range(2):
                    b = acc(2, tb, j, ft)
                    a(f"v_cvt_pk_bf16_f32 v{t+2*j}, v{b}, v{b+1}")
                    a(f"v_cvt_pk_bf16_f32 v{t+2*j+1}, v{b+2}, v{b+3}")
                a(f"buffer_store_dwordx4 {v(t,4)}, v15, {srd(WSS)}, s{37 if tb == 0 else 45} offen offset:{2048 + ft*256} sc1")
                a(f"ds_write_b128 v5, {v(t,4)} offset:{tb*8192 + 2048 + ft*256}")
                t += 4
        a(f"s_mov_b32 s44, {QSCALE}")
        for r in range(ACC, ACC + 32):
            a(f"v_mul_f32 v{r}, s44, v{r}")
        for tb in range(2):
            for j in range(2):
                for ft in range(2):
                    b = acc(0, tb, j, ft)
                    a(f"v_cvt_pk_bf16_f32 v{t+2*ft}, v{b}, v{b+1}")
                    a(f"v_cvt_pk_bf16_f32 v{t+2*ft+1}, v{b+2}, v{b+3}")
                a(f"ds_write_b128 v6, {v(t,4)} offset:{tb*4096 + j*128}")
                t += 4
        a("s_waitcnt vmcnt(0)")
        self.signal("s46", 8, 9)
        self.stamp()
        a("s_branch L_join")

    def producer(self):
        a = self.a
        nst0 = self.nst
        self.nst = 1
        a.label("L_prod")
        a(f"""
        s_sub_u32 s40, s{sW}, 4                  ; p
        v_lshrrev_b32 v8, 3, v{LANE}             ; lane/8
        v_and_b32 v9, 7, v{LANE}
        v_lshrrev_b32 v10, 1, v8                 ; (row>>1)&3
        s_and_b32 s36, s40, 2
        s_lshl_b32 s36, s36, 1
        v_or_b32 v11, s36, v10
        v_xor_b32 v11, v11, v9
        v_lshlrev_b32 v11, 4, v11
        v_lshlrev_b32 v12, 11, v8
        v_add_u32 v4, v11, v12                   ; voffset X
        v_and_b32 v11, 1, v10
        s_and_b32 s36, s40, 1
        s_lshl_b32 s36, s36, 1
        v_or_b32 v11, s36, v11                   ; swz
        v_lshlrev_b32 v11, 1, v11
        v_xor_b32 v11, v11, v9
        v_lshlrev_b32 v11, 4, v11
        v_mul_u32_u24 v12, 6144, v8
        v_add_u32 v5, v11, v12                   ; voffset W
        v_and_b32 v11, 1, v10
        v_lshlrev_b32 v11, 2, v11
        v_xor_b32 v11, v11, v9
        v_lshlrev_b32 v11, 4, v11
        v_lshlrev_b32 v12, 15, v8
        v_add_u32 v6, v11, v12
        s_lshl_b32 s41, s{sRB}, 18
        s_lshl_b32 s36, s40, 14
        s_add_u32 s41, s41, s36                  ; X base
        s_mul_i32 s42, s40, 49152
        s_lshl_b32 s36, s{sHG}, 7
        s_add_u32 s42, s42, s36                  ; W base
        s_lshl_b32 s43, s40, 10
        s_mov_b32 s44, 0                         ; stage
        """)
        if self.rot == 0: a("s_mov_b32 s45, 0")
        elif self.rot == 5: a(f"s_lshl_b32 s45, s{sRB}, 1\ns_lshl_b32 s36, s{sHG}, 2\ns_add_u32 s45, s45, s36\ns_and_b32 s45, s45, 15")
        elif self.rot == 3: a(f"s_mov_b32 s45, s{sRB}")
        def issue():
            a(f"""
            s_lshl_b32 s46, s45, 7
            s_add_u32 s46, s46, s41
            s_mul_i32 s47, s45, {64*6144}
            s_add_u32 s47, s47, s42
            """)
            for i in range(4):
                a(f"s_add_u32 m0, s43, {i*4096}")
                a(f"s_add_u32 s48, s46, {i*65536}")
                a(f"buffer_load_dwordx4 v4, {srd(XS)}, s48 offen lds")
            for i in range(6):
                sec = i // 2; rg = (i % 2) * 4
                a(f"s_add_u32 m0, s43, {16384 + i*4096}")
                a(f"s_add_u32 s48, s47, {rg*8*6144 + sec*2048}")
                a(f"buffer_load_dwordx4 v5, {srd(WS_)}, s48 offen lds")
            a(f"""
            s_add_u32 s45, s45, 1
            s_and_b32 s45, s45, 15
            s_add_u32 s44, s44, 1
            s_cmp_eq_u32 s44, 3
            s_cselect_b32 s48, {-(2*STG) & 0xffffffff}, s39
            s_cselect_b32 s44, 0, s44
            s_add_u32 s43, s43, s48
            """)
        issue(); issue()
        a("s_waitcnt vmcnt(10)\ns_barrier")
        self.stamp()
        issue()
        a(f"""
        s_lshr_b32 s36, s2, 4                    ; s2
        s_lshl_b32 s36, s36, 11
        s_and_b32 s37, s2, 15                    ; cg
        s_lshl_b32 s37, s37, 7
        s_add_u32 s36, s36, s37
        s_lshl_b32 s37, s40, 18
        s_add_u32 s36, s36, s37
        s_lshl_b32 s37, s40, 10
        """)
        for i in range(4):
            a(f"s_add_u32 m0, s37, {L_BX + i*4096}")
            a(f"s_add_u32 s48, s36, {i << 20}")
            a(f"buffer_load_dwordx4 v6, {srd(BXS)}, s48 offen lds")
        a("s_waitcnt vmcnt(14)\ns_barrier")
        issue()
        a(f"""
        v_and_b32 v8, 31, v{LANE}
        s_lshl_b32 s36, s40, 5
        v_add_u32 v8, s36, v8                    ; rho
        v_lshrrev_b32 v9, 1, v8                  ; t1
        v_and_b32 v10, 1, v8                     ; c
        v_cmp_eq_u32 vcc, 1, v8
        v_cndmask_b32 v9, v9, 64, vcc
        v_cndmask_b32 v10, v10, 0, vcc
        v_cvt_f32_u32 v9, v9
        v_mul_f32 v9, {f2u(1/128)}, v9           ; step
        v_cvt_f32_u32 v10, v10
        v_mul_f32 v10, {f2u(0.25)}, v10          ; phase
        v_lshrrev_b32 v11, 5, v{LANE}
        v_lshlrev_b32 v11, 3, v11
        v_cvt_f32_u32 v11, v11
        v_fma_f32 v12, v9, v11, v10              ; angle(kk=0,j=0)
        v_mul_f32 v13, {f2u(9.0)}, v9            ; 9*step
        """)
        a("s_waitcnt vmcnt(14)\ns_barrier")
        issue()
        CF = 64
        def constchunk(kk):
            a(f"v_mov_b32 v16, v12")
            for j in range(1, 8):
                a(f"v_add_f32 v{16+j}, v{15+j}, v9")
            a(f"v_add_f32 v12, v23, v13")
            for j in range(8):
                a(f"v_cos_f32 v{16+j}, v{16+j}")
            for j in range(4):
                a(f"v_cvt_pk_bf16_f32 v{CF+4*kk+j}, v{16+2*j}, v{17+2*j}")
        for k in range(2, 13):
            if k - 2 < 4:
                constchunk(2*(k-2)); constchunk(2*(k-2)+1)
            a("s_waitcnt vmcnt(10)\ns_barrier")
            issue()
        a("s_waitcnt vmcnt(10)\ns_barrier")
        a(f"""
        s_cmp_lg_u32 s40, 0
        s_cbranch_scc1 L_pe_skip
        s_mov_b32 s75, {SPIN}
        v_mov_b32 v8, 0
        L_pe:
        buffer_load_dword v7, v8, {srd(DBGS)}, 0 offen sc1
        s_waitcnt vmcnt(0)
        v_readfirstlane_b32 s36, v7
        s_cmp_lg_u32 s36, 0
        s_cbranch_scc1 L_pe_done
        s_sub_u32 s75, s75, 1
        s_cmp_lg_u32 s75, 0
        s_cbranch_scc1 L_pe
        L_pe_done:
        v_mov_b32 v8, {L_EPOCH}
        ds_write_b32 v8, v7
        L_pe_skip:
        s_waitcnt vmcnt(0) lgkmcnt(0)
        s_barrier
        """)
        a(f"""
        v_lshrrev_b32 v8, 4, v{LANE}             ; gg
        v_and_b32 v9, 1, v8
        v_lshlrev_b32 v9, 1, v9
        v_bfe_u32 v10, v{LANE}, 1, 1
        v_add_u32 v9, v9, v10
        v_bfe_u32 v10, v{LANE}, 3, 1
        v_lshlrev_b32 v10, 2, v10
        v_xor_b32 v9, v9, v10
        v_lshlrev_b32 v9, 4, v9
        v_and_b32 v10, 1, v{LANE}
        v_lshlrev_b32 v10, 3, v10
        v_add_u32 v9, v9, v10
        v_bfe_u32 v10, v{LANE}, 2, 2
        v_lshrrev_b32 v11, 5, v{LANE}
        v_lshlrev_b32 v12, 3, v11
        v_add_u32 v10, v10, v12
        v_lshlrev_b32 v10, 7, v10
        v_add_u32 v9, v9, v10
        v_add_u32 v4, {L_BX}, v9
        v_xor_b32 v5, 64, v4
        v_and_b32 v8, 31, v{LANE}
        v_lshlrev_b32 v8, 15, v8
        v_lshlrev_b32 v11, 4, v11
        v_add_u32 v6, v8, v11
        s_lshl_b32 s36, s40, 20
        s_lshr_b32 s37, s2, 4
        s_lshl_b32 s37, s37, 11
        s_add_u32 s36, s36, s37
        s_and_b32 s37, s2, 15
        s_lshl_b32 s37, s37, 7
        s_add_u32 s36, s36, s37
        s_add_u32 s46, s36, {WS_T}
        v_mov_b32 v8, {L_EPOCH}
        ds_read_b32 v9, v8
        s_waitcnt lgkmcnt(0)
        v_readfirstlane_b32 s{sEP}, v9
        s_barrier
        """)
        self.stamp()
        XB = 96
        for kk in range(8):
            for mt in range(2):
                b = XB + (mt*8+kk)*4
                a(f"ds_read_b64_tr_b16 {v(b,2)}, v{4+mt} offset:{kk*2048}")
                a(f"ds_read_b64_tr_b16 {v(b+2,2)}, v{4+mt} offset:{kk*2048+512}")
            if kk >= 2:
                k2 = kk - 2
                a("s_waitcnt lgkmcnt(8)")
                for mt in range(2):
                    d = v(16+16*mt, 16)
                    a(f"v_mfma_f32_32x32x16_bf16 {d}, {v(XB+(mt*8+k2)*4,4)}, {v(CF+4*k2,4)}, {d if k2 else 0}")
        for k2 in (6, 7):
            a(f"s_waitcnt lgkmcnt({4 if k2 == 6 else 0})")
            for mt in range(2):
                d = v(16+16*mt, 16)
                a(f"v_mfma_f32_32x32x16_bf16 {d}, {v(XB+(mt*8+k2)*4,4)}, {v(CF+4*k2,4)}, {d}")
        for mt in range(2):
            for j in range(8):
                a(f"v_cvt_pk_bf16_f32 v{48+8*mt+j}, v{16+16*mt+2*j}, v{17+16*mt+2*j}")
            for q in range(2):
                b = 48 + 8*mt + 4*q
                a(f"v_permlane32_swap_b32 v{b}, v{b+2}")
                a(f"v_permlane32_swap_b32 v{b+1}, v{b+3}")
                a(f"buffer_store_dwordx4 {v(b,4)}, v6, {srd(WSS)}, s46 offen offset:{mt*64 + q*32} sc1")
        self.stamp()
        assert not self.stamps or self.nst == nst0, (self.nst, nst0)

    def attention(self):
        a = self.a
        a.label("L_join")
        S = lambda i: 96 + 16*i
        Q = 16; KB = [24, 32, 40, 48]; O = 56; MK = 72; NM = 80; SUM = 82; PF = 240
        a(f"""
        s_lshr_b32 s36, s{sW}, 2
        s_add_u32 s36, s36, s{sRB}
        s_sub_u32 s36, s36, 2
        s_and_b32 s37, s{sW}, 3                  ; cw
        s_lshr_b32 s38, s37, 1
        s_lshl_b32 s38, s38, 14
        s_and_b32 s40, s37, 1
        s_lshl_b32 s40, s40, 12
        s_add_u32 s38, s38, s40
        s_lshr_b32 s40, s{sW}, 2
        s_lshl_b32 s40, s40, 15
        s_add_u32 s40, s40, s38
        v_add_u32 v4, s40, v{L16}
        s_mov_b32 s41, 0
        v_add_u32 v7, 0x20000000, v{L16}
        s_cmp_lt_i32 s36, 0
        s_cbranch_scc1 L_nb_go
        s_lshl_b32 s36, s36, 4
        s_add_u32 s36, s36, s{sHG}
        s_lshl_b32 s41, s36, 15
        s_add_u32 s41, s41, s38
        s_lshl_b32 s36, s36, 2
        s_add_u32 s36, s36, s37
        s_lshl_b32 s36, s36, 7
        s_add_u32 s36, s36, {WS_FKV}
        v_mov_b32 v5, 0
        v_mov_b32 v7, v{L16}
        """)
        self.poll(5, "s36", 6)
        a.label("L_nb_go")
        a("s_add_u32 s42, s41, 8192")
        for i in range(8):
            a(f"buffer_load_dwordx4 {v(112+4*i,4)}, v7, {srd(WSS)}, s{41 + i//4} offen offset:{(i%4)*1024} sc1")
        a(f"""
        v_and_b32 v8, 31, v{LANE}
        v_lshrrev_b32 v9, 5, v{LANE}
        v_lshlrev_b32 v9, 2, v9
        v_sub_u32 v8, v8, v9                     ; q - 4hi
        s_mov_b32 s43, {NEGBIG}
        """)
        for i in range(16):
            c = (i % 4) + 8 * (i // 4)
            a(f"v_subrev_u32 v{S(8)+i}, {c}, v8")
            a(f"v_ashrrev_i32 v{S(8)+i}, 31, v{S(8)+i}")
        for j in range(8):
            a(f"v_perm_b32 v{MK+j}, v{S(8)+2*j+1}, v{S(8)+2*j}, s44" if False else f"v_and_b32 v10, 0xffff, v{S(8)+2*j}")
            a(f"v_and_b32 v11, 0xffff0000, v{S(8)+2*j+1}")
            a(f"v_or_b32 v{MK+j}, v10, v11")
        for i in range(16):
            a(f"v_and_b32 v{S(8)+i}, s43, v{S(8)+i}")
            a(f"v_xor_b32 v{S(0)+i}, s43, v{S(8)+i}")
        for i in range(8):
            a(f"s_waitcnt vmcnt({7-i})")
            a(f"ds_write_b128 v4, {v(112+4*i,4)} offset:{(i//4)*8192 + (i%4)*1024}")
        a(f"""
        s_and_b32 s40, s{sW}, 1                  ; h
        s_lshr_b32 s41, s{sW}, 1                 ; qb
        s_lshl_b32 s36, s{sW}, 12                ; (qb*2+h)*4096
        v_add_u32 v4, s36, v{L16}
        s_lshl_b32 s36, s{sW}, 11
        s_add_u32 s36, s36, {L_Q}
        v_add_u32 v5, s36, v{L16}
        v_add_u32 v6, 0x8000, v4
        s_lshl_b32 s42, s{sRB}, 2
        s_add_u32 s42, s42, s41                  ; G
        s_sub_u32 s43, 8, s42
        s_max_i32 s43, s43, 0                    ; i0
        s_waitcnt vmcnt(0) lgkmcnt(0)
        s_barrier
        """)
        self.stamp()
        a(f"""
        s_cmp_lg_u32 s{sW}, 7
        s_cbranch_scc1 L_noT
        s_lshl_b32 s36, s2, 2
        s_add_u32 s36, s36, {WS_FT}
        """)
        self.signal("s36", 8, 9)
        a.label("L_noT")
        def kv_read(i, which, buf):
            off = i*8192 + which*2048
            base = 4
            if off >= 32768: base = 6; off -= 32768
            return [f"ds_read_b128 {v(buf,4)}, v{base} offset:{off}", f"ds_read_b128 {v(buf+4,4)}, v{base} offset:{off+1024}"]
        a(f"ds_read_b128 {v(Q,4)}, v5")
        a(f"ds_read_b128 {v(Q+4,4)}, v5 offset:1024")
        for i in (8, 7, 6):
            for r in kv_read(i, 0, KB[i % 4]): a(r)
        for i in range(8, -1, -1):
            a(f"s_waitcnt lgkmcnt({min(i,2)*2})")
            kb = KB[i % 4]
            c = v(S(i), 16) if i in (0, 8) else "0"
            a(f"v_mfma_f32_32x32x16_bf16 {v(S(i),16)}, {v(kb,4)}, {v(Q,4)}, {c}")
            a(f"v_mfma_f32_32x32x16_bf16 {v(S(i),16)}, {v(kb+4,4)}, {v(Q+4,4)}, {v(S(i),16)}")
            if i - 3 >= 0:
                for r in kv_read(i - 3, 0, KB[(i-3) % 4]): a(r)
            if i > 0:
                a(f"s_cmp_eq_u32 s43, {i}")
                a(f"s_cbranch_scc1 L_fill{i}")
        a.label("L_qkdone")
        a("s_waitcnt lgkmcnt(0)")
        order = [7, 6, 5, 4, 3, 2, 1, 8]
        for n, i in enumerate(order[:3]):
            for r in kv_read(i, 1, KB[n % 4]): a(r)
        mx = [SUM, SUM+1, SUM+2, SUM+3]
        first = True
        for i in order[:7]:
            for j in range(8):
                m = mx[j % 4]
                if first and j < 4: a(f"v_max_f32 v{m}, v{S(i)+2*j}, v{S(i)+2*j+1}")
                else: a(f"v_max3_f32 v{m}, v{m}, v{S(i)+2*j}, v{S(i)+2*j+1}")
            first = False
        for j in range(16):
            a(f"v_max_f32 v{S(8)+j}, v{S(8)+j}, v{S(0)+j}")
        for j in range(8):
            m = mx[j % 4]
            a(f"v_max3_f32 v{m}, v{m}, v{S(8)+2*j}, v{S(8)+2*j+1}")
        a(f"""
        v_max3_f32 v{SUM}, v{SUM}, v{SUM+1}, v{SUM+2}
        v_max_f32 v{SUM}, v{SUM}, v{SUM+3}
        v_mov_b32 v{SUM+1}, v{SUM}
        v_permlane32_swap_b32 v{SUM}, v{SUM+1}
        v_max_f32 v{SUM}, v{SUM}, v{SUM+1}
        v_sub_f32 v{NM}, 0, v{SUM}
        v_sub_f32 v{NM+1}, 0, v{SUM}
        """)
        for j in range(4): a(f"v_mov_b32 v{SUM+j}, 0")
        for n, i in enumerate(order):
            b = S(i)
            for j in range(8):
                a(f"v_pk_add_f32 {v(b+2*j,2)}, {v(b+2*j,2)}, {v(NM,2)}")
            for j in range(16):
                a(f"v_exp_f32 v{b+j}, v{b+j}")
            for j in range(8):
                sm = SUM + 2*(j % 2)
                a(f"v_pk_add_f32 {v(sm,2)}, {v(sm,2)}, {v(b+2*j,2)}")
            for j in range(8):
                a(f"v_cvt_pk_bf16_f32 v{b+j}, v{b+2*j}, v{b+2*j+1}")
            vb = KB[n % 4]
            if i == 8:
                for j in range(8):
                    a(f"v_and_b32 v{PF+j}, v{MK+j}, v{b+j}")
                    a(f"v_xor_b32 v{b+j}, v{PF+j}, v{b+j}")
            rem = min(8 - n, 2)
            a(f"s_waitcnt lgkmcnt({rem*2})")
            a(f"v_mfma_f32_32x32x16_bf16 {v(O,16)}, {v(vb,4)}, {v(b,4)}, {v(O,16) if n else 0}")
            a(f"v_mfma_f32_32x32x16_bf16 {v(O,16)}, {v(vb+4,4)}, {v(b+4,4)}, {v(O,16)}")
            nxt = (order + [0])
            if n + 3 < len(nxt):
                for r in kv_read(nxt[n+3], 1, KB[(n+3) % 4]): a(r)
        vb = KB[8 % 4]
        a("s_waitcnt lgkmcnt(0)")
        a(f"v_mfma_f32_32x32x16_bf16 {v(O,16)}, {v(vb,4)}, {v(PF,4)}, {v(O,16)}")
        a(f"v_mfma_f32_32x32x16_bf16 {v(O,16)}, {v(vb+4,4)}, {v(PF+4,4)}, {v(O,16)}")
        a(f"""
        v_pk_add_f32 {v(SUM,2)}, {v(SUM,2)}, {v(SUM+2,2)}
        v_add_f32 v{SUM}, v{SUM}, v{SUM+1}
        v_mov_b32 v{SUM+1}, v{SUM}
        v_permlane32_swap_b32 v{SUM}, v{SUM+1}
        v_add_f32 v{SUM}, v{SUM}, v{SUM+1}
        v_rcp_f32 v{NM}, v{SUM}
        v_rcp_f32 v{NM+1}, v{SUM}
        ; o store offset: (q/16)*32768 + hi*256 + (q%16)*16
        v_bfe_u32 v8, v{LANE}, 4, 1
        v_lshlrev_b32 v8, 15, v8
        v_lshrrev_b32 v9, 5, v{LANE}
        v_lshlrev_b32 v9, 8, v9
        v_add_u32 v8, v8, v9
        v_and_b32 v9, 15, v{LANE}
        v_lshlrev_b32 v9, 4, v9
        v_add_u32 v8, v8, v9
        s_lshl_b32 s36, s{sHG}, 1
        s_add_u32 s36, s36, s40                  ; head
        s_lshl_b32 s37, s42, 16
        s_lshl_b32 s38, s36, 10
        s_add_u32 s37, s37, s38
        s_add_u32 s37, s37, {WS_O}
        s_lshl_b32 s38, s42, 5
        s_add_u32 s38, s38, s36
        s_lshl_b32 s38, s38, 2
        s_add_u32 s46, s38, {WS_FO}
        """)
        for j in range(8):
            a(f"v_pk_mul_f32 {v(O+2*j,2)}, {v(O+2*j,2)}, {v(NM,2)}")
        for j in range(8):
            a(f"v_cvt_pk_bf16_f32 v{16+j}, v{O+2*j}, v{O+2*j+1}")
        a(f"buffer_store_dwordx4 v[16:19], v8, {srd(WSS)}, s37 offen sc1")
        a(f"buffer_store_dwordx4 v[20:23], v8, {srd(WSS)}, s37 offen offset:512 sc1")
        a("s_waitcnt vmcnt(0)")
        self.signal("s46", 8, 9)
        self.stamp()
    def attention_fill(self):
        a = self.a
        S = lambda i: 96 + 16*i
        for i in range(8, 0, -1):
            a.label(f"L_fill{i}")
            for j in range(16):
                a(f"v_mov_b32 v{S(i-1)+j}, {NEGBIG}")
        a("s_nop 7\ns_nop 7")
        a("s_branch L_qkdone")

    def pass2_and_wo(self):
        a = self.a
        C = 192
        FR, FI, NFI, TR, TI, MF = C, C+8, C+16, C+24, C+40, C+56
        a(f"v_add_u32 v4, {L_CONST}, v{L16}")
        for i in range(15):
            a(f"ds_read_b128 {v(C+4*i,4)}, v4 offset:{i*1024}")
        a(f"""
        s_and_b32 s36, s2, 7
        s_lshl_b32 s50, s36, 1
        s_lshr_b32 s37, s2, 7
        s_add_u32 s50, s50, s37                  ; rb'
        s_bfe_u32 s51, s2, 0x40003               ; cb
        v_lshrrev_b32 v8, 3, v{LANE}
        v_and_b32 v9, 7, v{LANE}
        v_and_b32 v10, 6, v8                     ; ((row>>1)&3)<<1
        v_xor_b32 v9, v9, v10
        v_lshlrev_b32 v9, 4, v9
        v_lshlrev_b32 v8, 11, v8
        v_add_u32 v7, v8, v9
        s_lshl_b32 s40, s{sW}, 14
        s_lshl_b32 s41, s51, 7
        s_add_u32 s40, s40, s41
        s_lshl_b32 s41, s{sW}, 10
        s_mov_b32 s36, {WS_FT}
        """)
        self.poll(L16, "s36", 8, width=4)
        a(f"""
        s_and_b32 s36, s2, 7
        s_lshl_b32 s36, s36, 3
        s_lshr_b32 s37, s2, 5
        s_add_u32 s36, s36, s37                  ; class
        s_lshl_b32 s42, s36, 16
        s_lshl_b32 s37, s{sW}, 8
        s_add_u32 s42, s42, s37
        s_add_u32 s42, s42, {WS_T}
        s_add_u32 s43, s42, 32768
        s_add_u32 s44, s42, 4096
        s_add_u32 s45, s43, 4096
        v_lshrrev_b32 v8, 4, v{LANE}
        v_lshlrev_b32 v8, 13, v8                 ; g*4 rows*2048
        v_and_b32 v9, 15, v{LANE}
        v_lshlrev_b32 v9, 4, v9
        v_add_u32 v8, v8, v9
        """)
        TL = 96
        for q in range(8):
            c = q % 2; jj = q // 2
            so = 42 + c + 2*(jj // 2)
            a(f"buffer_load_dwordx4 {v(TL+4*q,4)}, v8, {srd(WSS)}, s{so} offen offset:{(jj%2)*2048} sc1")
        a("s_waitcnt lgkmcnt(0)")
        a("s_barrier")
        self.stamp()
        for i in range(16):
            a(f"s_add_u32 m0, s41, {i*8192}")
            a(f"s_add_u32 s48, s40, {i*131072}")
            a(f"buffer_load_dwordx4 v7, {srd(WOS)}, s48 offen lds")
        a(f"""
        v_and_b32 v9, 15, v{LANE}
        v_lshrrev_b32 v10, 4, v{LANE}
        v_lshlrev_b32 v10, 2, v10
        v_and_b32 v11, 7, v9
        v_xor_b32 v10, v10, v11
        v_lshlrev_b32 v10, 4, v10
        v_lshlrev_b32 v9, 11, v9
        v_add_u32 v9, v9, v10
        s_lshl_b32 s36, s{sW}, 8
        s_add_u32 s36, s36, {L_V}
        v_add_u32 v12, s36, v9
        v_xor_b32 v13, 16, v12
        v_xor_b32 v14, 32, v12
        v_xor_b32 v15, 48, v12
        s_mov_b32 s36, 0x05040100
        s_mov_b32 s37, 0x07060302
        s_waitcnt vmcnt(16)
        """)
        AO = 128
        for dd in range(8):
            for jj in range(4):
                lo = TL + 4*(2*jj) + dd//2; hi = TL + 4*(2*jj+1) + dd//2
                a(f"v_perm_b32 v{AO+4*dd+jj}, v{hi}, v{lo}, s{36 + dd % 2}")
        VD = 160
        for dd in range(8):
            a(f"v_mfma_f32_16x16x32_bf16 {v(VD+4*dd,4)}, {v(AO+4*dd,4)}, {v(MF,4)}, 0")
        for i in range(4):
            for p in range(4):
                a(f"v_cvt_pk_bf16_f32 v{16+4*i+p}, v{VD+4*(2*p)+i}, v{VD+4*(2*p+1)+i}")
            a(f"ds_write_b128 v{12+i}, {v(16+4*i,4)}")
        a(f"""
        v_bfe_u32 v8, v{LANE}, 2, 2              ; rr
        v_lshrrev_b32 v9, 5, v{LANE}
        v_lshlrev_b32 v9, 2, v9
        v_add_u32 v8, v8, v9
        v_lshlrev_b32 v8, 6, v8
        v_bfe_u32 v9, v{LANE}, 4, 1
        v_lshlrev_b32 v9, 5, v9
        v_add_u32 v8, v8, v9
        v_and_b32 v9, 3, v{LANE}
        v_lshlrev_b32 v9, 3, v9
        v_add_u32 v8, v8, v9
        s_lshl_b32 s36, s{sW}, 1
        s_and_b32 s36, s36, 7
        s_lshl_b32 s36, s36, 4
        v_xor_b32 v8, s36, v8
        v_xor_b32 v9, 16, v8
        s_lshl_b32 s36, s{sW}, 12
        s_add_u32 s36, s36, {L_V}
        v_add_u32 v8, s36, v8
        v_add_u32 v9, s36, v9
        s_waitcnt lgkmcnt(0)
        s_barrier
        """)
        VR, VI = 96, 104
        for f in range(2):
            a(f"ds_read_b64_tr_b16 {v(VR+4*f,2)}, v8 offset:{f*1024}")
            a(f"ds_read_b64_tr_b16 {v(VR+4*f+2,2)}, v8 offset:{f*1024+512}")
        for f in range(2):
            a(f"ds_read_b64_tr_b16 {v(VI+4*f,2)}, v9 offset:{2048+f*1024}")
            a(f"ds_read_b64_tr_b16 {v(VI+4*f+2,2)}, v9 offset:{2048+f*1024+512}")
        UR, UI = 112, 128
        a("s_waitcnt lgkmcnt(4)")
        mm = "v_mfma_f32_32x32x16_bf16"
        a(f"{mm} {v(UR,16)}, {v(VR,4)}, {v(FR,4)}, 0")
        a(f"{mm} {v(UI,16)}, {v(VR,4)}, {v(FI,4)}, 0")
        a(f"{mm} {v(UR,16)}, {v(VR+4,4)}, {v(FR+4,4)}, {v(UR,16)}")
        a(f"{mm} {v(UI,16)}, {v(VR+4,4)}, {v(FI+4,4)}, {v(UI,16)}")
        a("s_waitcnt lgkmcnt(0)")
        for f in range(2):
            a(f"{mm} {v(UR,16)}, {v(VI+4*f,4)}, {v(NFI+4*f,4)}, {v(UR,16)}")
            a(f"{mm} {v(UI,16)}, {v(VI+4*f,4)}, {v(FR+4*f,4)}, {v(UI,16)}")
        PR, PI = 144, 160
        for j in range(8):
            a(f"v_pk_mul_f32 {v(PR+2*j,2)}, {v(UR+2*j,2)}, {v(TR+2*j,2)}")
            a(f"v_pk_mul_f32 {v(PI+2*j,2)}, {v(UR+2*j,2)}, {v(TI+2*j,2)}")
        for j in range(8):
            a(f"v_pk_fma_f32 {v(PR+2*j,2)}, {v(UI+2*j,2)}, {v(TI+2*j,2)}, {v(PR+2*j,2)} neg_lo:[1,0,0] neg_hi:[1,0,0]")
            a(f"v_pk_fma_f32 {v(PI+2*j,2)}, {v(UI+2*j,2)}, {v(TR+2*j,2)}, {v(PI+2*j,2)}")
        for j in range(8):
            a(f"v_cvt_pk_bf16_f32 v{96+j}, v{PR+2*j}, v{PR+2*j+1}")
        for j in range(8):
            a(f"v_cvt_pk_bf16_f32 v{104+j}, v{PI+2*j}, v{PI+2*j+1}")
        Y = 112
        a(f"{mm} {v(Y,16)}, {v(96,4)}, {v(FR,4)}, 0")
        a(f"{mm} {v(Y,16)}, {v(100,4)}, {v(FR+4,4)}, {v(Y,16)}")
        a(f"{mm} {v(Y,16)}, {v(104,4)}, {v(NFI,4)}, {v(Y,16)}")
        a(f"{mm} {v(Y,16)}, {v(108,4)}, {v(NFI+4,4)}, {v(Y,16)}")
        a(f"""
        s_and_b32 s36, s2, 7
        s_lshl_b32 s36, s36, 3
        s_lshr_b32 s37, s2, 5
        s_add_u32 s36, s36, s37                  ; class j
        s_lshr_b32 s37, s2, 3
        s_and_b32 s38, s37, 1                    ; half
        s_bfe_u32 s37, s37, 0x10001              ; mirror
        s_sub_u32 s42, 128, s36
        s_cmp_eq_u32 s36, 0
        s_cselect_b32 s42, 64, s42
        s_cmp_eq_u32 s37, 0
        s_cselect_b32 s42, s36, s42              ; t1
        s_lshl_b32 s38, s38, 3
        s_add_u32 s38, s38, s{sW}
        s_lshl_b32 s38, s38, 7
        s_add_u32 s42, s42, s38
        s_lshl_b32 s42, s42, 12
        v_and_b32 v8, 31, v{LANE}
        v_lshlrev_b32 v8, 6, v8
        v_lshrrev_b32 v9, 5, v{LANE}
        v_lshlrev_b32 v9, 4, v9
        v_add_u32 v8, v8, v9
        """)
        for j in range(8):
            a(f"v_cvt_pk_bf16_f32 v{16+j}, v{Y+2*j}, v{Y+2*j+1}")
        for q in range(2):
            b = 16 + 4*q
            a(f"v_permlane32_swap_b32 v{b}, v{b+2}")
            a(f"v_permlane32_swap_b32 v{b+1}, v{b+3}")
            a(f"buffer_store_dwordx4 {v(b,4)}, v8, {srd(OUTS)}, s42 offen offset:{2048 + q*32}")
        self.stamp()

    def outproj(self):
        a = self.a
        OA = 64; ACC = 192; WF = [16, 32]
        a(f"""
        s_and_b32 s40, s{sW}, 3                  ; mw
        s_lshr_b32 s41, s{sW}, 2                 ; kh
        s_lshl_b32 s42, s50, 2
        s_add_u32 s42, s42, s40
        s_lshl_b32 s36, s42, 7
        s_lshl_b32 s37, s41, 6
        s_add_u32 s36, s36, s37
        s_add_u32 s36, s36, {WS_FO}
        v_and_b32 v8, 15, v{LANE}
        v_lshlrev_b32 v8, 2, v8
        """)
        self.poll(8, "s36", 9)
        a(f"""
        s_lshl_b32 s43, s42, 16
        s_lshl_b32 s37, s41, 14
        s_add_u32 s43, s43, s37
        s_add_u32 s43, s43, {WS_O}
        s_lshl_b32 s37, s41, 15
        s_add_u32 s44, s43, s37
        s_xor_b32 s45, s37, 32768
        s_add_u32 s45, s43, s45
        """)
        for hd in range(16):
            if hd % 4 == 0 and hd:
                a("s_add_u32 s44, s44, 4096\ns_add_u32 s45, s45, 4096")
            for tt in range(2):
                a(f"buffer_load_dwordx4 {v(OA+(hd*2+tt)*4,4)}, v{L16}, {srd(WSS)}, s{44+tt} offen offset:{(hd%4)*1024} sc1")
        a(f"""
        v_lshrrev_b32 v8, 4, v{LANE}             ; g
        v_bfe_u32 v9, v{LANE}, 2, 2              ; rr
        v_and_b32 v10, 1, v8
        v_lshlrev_b32 v10, 2, v10
        v_add_u32 v9, v9, v10                    ; 4*(g%2)+rr
        v_lshrrev_b32 v10, 1, v9                 ; swz
        v_lshlrev_b32 v10, 5, v10
        v_lshrrev_b32 v11, 1, v8
        v_lshlrev_b32 v11, 4, v11
        v_add_u32 v9, v9, v11
        v_lshlrev_b32 v9, 7, v9
        v_add_u32 v9, v9, v10
        v_and_b32 v10, 3, v{LANE}
        v_lshlrev_b32 v10, 3, v10
        v_add_u32 v9, v9, v10
        s_lshl_b32 s36, s41, 16
        v_add_u32 v4, s36, v9
        v_xor_b32 v5, 32, v4
        v_xor_b32 v6, 64, v4
        v_xor_b32 v7, 0x60, v4
        s_barrier
        """)
        self.stamp()
        def reads(hd):
            r = []
            for nt in range(4):
                b = WF[hd % 2] + nt*4
                r.append(f"ds_read_b64_tr_b16 {v(b,2)}, v{4+nt} offset:{hd*4096}")
                r.append(f"ds_read_b64_tr_b16 {v(b+2,2)}, v{4+nt} offset:{hd*4096+1024}")
            return r
        for r in reads(0): a(r)
        for hd in range(16):
            a(f"s_waitcnt vmcnt({30-2*hd}) lgkmcnt(0)")
            m = []
            for nt in range(4):
                for tt in range(2):
                    d = v(ACC + (tt*4+nt)*4, 4)
                    m.append(f"v_mfma_f32_16x16x32_bf16 {d}, {v(WF[hd%2]+nt*4,4)}, {v(OA+(hd*2+tt)*4,4)}, {d if hd else 0}")
            for ins in interleave(m, reads(hd+1) if hd < 15 else [], 1): a(ins)
        a(f"""
        s_lshl_b32 s36, s{sW}, 12
        s_add_u32 s36, s36, {L_V}
        v_add_u32 v4, s36, v{L16}
        v_xor_b32 v5, 0x4000, v4
        """)
        for nt in range(4):
            a(f"ds_write_b128 v4, {v(ACC+16+nt*4,4)} offset:{nt*1024}")
        a(f"""
        v_and_b32 v8, 15, v{LANE}
        v_lshlrev_b32 v8, 12, v8
        v_bfe_u32 v9, v{LANE}, 4, 1
        v_lshlrev_b32 v9, 5, v9
        v_add_u32 v8, v8, v9
        v_lshrrev_b32 v9, 5, v{LANE}
        v_lshlrev_b32 v9, 4, v9
        v_add_u32 v8, v8, v9
        s_lshl_b32 s36, s42, 1
        s_add_u32 s36, s36, s41
        s_lshl_b32 s36, s36, 16
        s_lshl_b32 s37, s51, 7
        s_add_u32 s36, s36, s37
        s_waitcnt lgkmcnt(0)
        s_barrier
        """)
        for nt in range(4):
            a(f"ds_read_b128 {v(16+nt*4,4)}, v5 offset:{nt*1024}")
        for nt in range(4):
            a(f"s_waitcnt lgkmcnt({3-nt})")
            for j in range(2):
                a(f"v_pk_add_f32 {v(ACC+nt*4+2*j,2)}, {v(ACC+nt*4+2*j,2)}, {v(16+nt*4+2*j,2)}")
            for j in range(2):
                a(f"v_cvt_pk_bf16_f32 v{32+nt*2+j}, v{ACC+nt*4+2*j}, v{ACC+nt*4+2*j+1}")
        for q in range(2):
            b = 32 + 4*q
            a(f"v_permlane16_swap_b32 v{b}, v{b+2}")
            a(f"v_permlane16_swap_b32 v{b+1}, v{b+3}")
            a(f"buffer_store_dwordx4 {v(b,4)}, v8, {srd(OUTS)}, s36 offen offset:{q*64}")

    def finish(self):
        a = self.a
        if self.stamps:
            a("s_waitcnt vmcnt(0)")
            self.stamp()
            a(f"""
            s_waitcnt lgkmcnt(0)
            s_lshl_b32 s36, s2, 3
            s_add_u32 s36, s36, s{sW}
            s_lshl_b32 s36, s36, 6
            s_add_u32 s36, s36, {WS_STAMP}
            v_mov_b32 v8, 0
            """)
            for i in range(12):
                a(f"v_mov_b32 v{16+i}, s{76+2*i}")
            for i in range(3):
                a(f"buffer_store_dwordx4 {v(16+4*i,4)}, v8, {srd(WSS)}, s36 offen offset:{16*i}")
        a.label("L_end")
        a("s_endpgm")

    def build(self):
        self.setup(); self.consumer(); self.producer(); self.attention(); self.pass2_and_wo(); self.outproj(); self.finish(); self.attention_fill()
        lines = hazard.fix(self.a.lines)
        ref = open("concat_heads__sliding_block__spectral_fnet__prompt.s.ref").read().split("\n") if False else []
        hdr = "; fused QKV GEMM + sliding-window attention + out-proj + FFT-factored FNet, one persistent launch\n"
        hdr += "; @launch grid=(256,1,1) block=(512,1,1) lds=163840\n"
        return hdr + HDR + kernel_head(NAME) + "\n".join(lines) + "\n" + '.section .rodata,"a"\n' + kernel_desc(NAME, vgpr=256)

if __name__ == "__main__":
    out = sys.argv[1] if len(sys.argv) > 1 else "concat_heads__sliding_block__spectral_fnet__prompt.s"
    open(out, "w").write(Gen().build())
```
